```python
import torch

def _softmax(x, axis=-1):
    return torch.softmax(x, dim=axis)
def _gelu(x):
    return torch.nn.functional.gelu(x, approximate="tanh")
def _silu(x):
    return torch.nn.functional.silu(x)
def _sigmoid(x):
    return torch.sigmoid(x)
def _layernorm(x, axis=-1, eps=1e-5):
    m = x.mean(dim=axis, keepdim=True)
    v = x.var(dim=axis, keepdim=True, unbiased=False)
    return (x - m) / torch.sqrt(v + eps)
def _scatter_add(tgt, idx, src, axis=0):
    return tgt.clone().index_add_(axis, idx, src)
def _segment_sum(src, seg, n):
    out = torch.zeros((n,) + src.shape[1:], dtype=src.dtype)
    return out.index_add_(0, seg, src)
def _pad(x, pw):
    flat = tuple(v for pair in reversed(pw) for v in pair)
    return torch.nn.functional.pad(x, flat)

kernel_name = 'concat_heads__sliding_block_cached__sliding_block_cached__decode'

def setup_inputs():

    _w = (lambda a: (lambda t: t.to(torch.bfloat16) if t.is_floating_point() else t)(torch.as_tensor(a)))
    def _A_setup():
        B, Sq, D = 8, 1, 1024
        Hq, Hkv, Sk, Dh = 32, 4, 4096, 128
        assert Hq % Hkv == 0, (Hq, Hkv)
        return {
            "x": _w((lambda *s: torch.randn(*s, dtype=torch.bfloat16) * 0.8)(B, Sq, D)),
            "k_cache": _w((lambda *s: torch.randn(*s, dtype=torch.bfloat16) * 0.8)(B, Hkv, Sk, Dh)),
            "v_cache": _w((lambda *s: torch.randn(*s, dtype=torch.bfloat16) * 0.05)(B, Hkv, Sk, Dh)),
            "wq": _w((lambda *s: torch.randn(*s, dtype=torch.bfloat16) * 0.8)(D, Hq * Dh) * (D ** -0.5)),
            "wo": _w((lambda *s: torch.randn(*s, dtype=torch.bfloat16) * 0.05)(Hq * Dh, D) * ((Hq * Dh) ** -0.5)),
        }
    _A_in = _A_setup()

    def _B_setup():
        B, Sq, D = 8, 1, 1024
        Hq, Hkv, Sk, Dh = 32, 4, 4096, 128
        assert Hq % Hkv == 0, (Hq, Hkv)
        return {
            "x": _w((lambda *s: torch.randn(*s, dtype=torch.bfloat16) * 0.8)(B, Sq, D)),
            "k_cache": _w((lambda *s: torch.randn(*s, dtype=torch.bfloat16) * 0.8)(B, Hkv, Sk, Dh)),
            "v_cache": _w((lambda *s: torch.randn(*s, dtype=torch.bfloat16) * 0.05)(B, Hkv, Sk, Dh)),
            "wq": _w((lambda *s: torch.randn(*s, dtype=torch.bfloat16) * 0.8)(D, Hq * Dh) * (D ** -0.5)),
            "wo": _w((lambda *s: torch.randn(*s, dtype=torch.bfloat16) * 0.05)(Hq * Dh, D) * ((Hq * Dh) ** -0.5)),
        }
    _B_in = _B_setup()

    return {
        "A_x": _A_in["x"],
        "A_k_cache": _A_in["k_cache"],
        "A_v_cache": _A_in["v_cache"],
        "A_wq": _A_in["wq"],
        "A_wo": _A_in["wo"],
        "B_x": _B_in["x"],
        "B_k_cache": _B_in["k_cache"],
        "B_v_cache": _B_in["v_cache"],
        "B_wq": _B_in["wq"],
        "B_wo": _B_in["wo"],
    }

def reference(A_x, A_k_cache, A_v_cache, A_wq, A_wo, B_x, B_k_cache, B_v_cache, B_wq, B_wo):
    def _A_ref(x, k_cache, v_cache, wq, wo):
        B, Sq, D = x.shape
        Hq, Dh = 32, 128
        Hkv, Sk = k_cache.shape[1], k_cache.shape[2]
        W = min(4096, max(256, Sk // 4))
        rep = Hq // Hkv
        q = (lambda x, *d: x.permute(*d))((x @ wq).reshape(B, Sq, Hq, Dh), 0, 2, 1, 3)
        k = (lambda x, n, axis: torch.repeat_interleave(x, n, dim=axis))(k_cache[:, :, Sk - W:, :], rep, axis=1)
        v = (lambda x, n, axis: torch.repeat_interleave(x, n, dim=axis))(v_cache[:, :, Sk - W:, :], rep, axis=1)
        scores = torch.einsum("bhqd,bhkd->bhqk", q, k) * (Dh ** -0.5)
        p = _softmax(scores, axis=-1)
        o = torch.einsum("bhqk,bhkd->bhqd", p, v)
        return (lambda x, *d: x.permute(*d))(o, 0, 2, 1, 3).reshape(B, Sq, Hq * Dh) @ wo

    def _B_ref(x, k_cache, v_cache, wq, wo):
        B, Sq, D = x.shape
        Hq, Dh = 32, 128
        Hkv, Sk = k_cache.shape[1], k_cache.shape[2]
        W = min(4096, max(256, Sk // 4))
        rep = Hq // Hkv
        q = (lambda x, *d: x.permute(*d))((x @ wq).reshape(B, Sq, Hq, Dh), 0, 2, 1, 3)
        k = (lambda x, n, axis: torch.repeat_interleave(x, n, dim=axis))(k_cache[:, :, Sk - W:, :], rep, axis=1)
        v = (lambda x, n, axis: torch.repeat_interleave(x, n, dim=axis))(v_cache[:, :, Sk - W:, :], rep, axis=1)
        scores = torch.einsum("bhqd,bhkd->bhqk", q, k) * (Dh ** -0.5)
        p = _softmax(scores, axis=-1)
        o = torch.einsum("bhqk,bhkd->bhqd", p, v)
        return (lambda x, *d: x.permute(*d))(o, 0, 2, 1, 3).reshape(B, Sq, Hq * Dh) @ wo

    a = _A_ref(A_x, A_k_cache, A_v_cache, A_wq, A_wo)
    b = _B_ref(B_x, B_k_cache, B_v_cache, B_wq, B_wo)
    return torch.concatenate([a, b], axis=-1)
```

```python
KNAME = "concat_heads__sliding_block_cached__sliding_block_cached__decode_kernel"

class Asm:
    def __init__(self):
        self.lines = []
        self.nlab = 0
    def __call__(self, s=""):
        for l in s.split("\n"):
            self.lines.append("    " + l.strip() if l.strip() and not l.strip().endswith(":") else l.strip())
    def label(self, base="L"):
        self.nlab += 1
        return f"{base}_{self.nlab}"
    def text(self):
        return "\n".join(self.lines) + "\n"

HEADER_COMMENT = """; Kernarg layout (104 bytes, ptrs only, base s[0:1]):
"""

def wrap(body, grid, block, lds, nvgpr, nsgpr=102, accum=None, kname=KNAME, header=HEADER_COMMENT):
    if accum is None:
        accum = (nvgpr + 3) // 4 * 4
        accum = min(accum, 256)
    return f"""{header}; @launch grid=({grid},1,1) block=({block},1,1) lds={lds}
.amdgcn_target "amdgcn-amd-amdhsa--gfx950"
.text
.globl {kname}
.p2align 8
.type {kname},@function
{kname}:
{body}
.section .rodata,"a"
.p2align 6
.amdhsa_kernel {kname}
  .amdhsa_next_free_vgpr {nvgpr}
  .amdhsa_next_free_sgpr {nsgpr}
  .amdhsa_accum_offset {accum}
  .amdhsa_group_segment_fixed_size 0
  .amdhsa_kernarg_size 104
  .amdhsa_user_sgpr_count 2
  .amdhsa_user_sgpr_kernarg_segment_ptr 1
  .amdhsa_system_sgpr_workgroup_id_x 1
.end_amdhsa_kernel
"""
```

```python
import sys, math, struct
from asmlib import *

SLOTA, SLOTB = 0, 65536
XIMG, QIMG, PIMG, OIMG = 131072, 135168, 137216, 141312
MAXB, SUMB, CNT, PROG = 143360, 143616, 143872, 144128
LDS_BYTES = 144384
C_XRDY, C_WQFREE, C_KFREE, C_QPUB, C_QRDY, C_MRDY, C_PRDY, C_OPUB, C_ORDY, C_H1, C_H2 = [4*i for i in range(11)]
WS_EPOCH, WS_F1, WS_F2 = 0, 0x10000, 0x20000
WS_QP, WS_OP, WS_ML, WS_FP = 0x100000, 0x200000, 0x300000, 0x400000
WS_SIZE = 0x600000
WS_STAMP = 0x800000

def f32(x): return struct.unpack("<I", struct.pack("<f", x))[0]

def gen(W=(32, 32, 32, 32), diag=False, nt="nt", hint_sleep=2):
    a = Asm()
    NT = (" " + nt) if nt else ""
    nst = [0]
    STB = 70
    def stamp():
        if diag:
            assert nst[0] < 16
            a(f"s_memrealtime s[{STB+2*nst[0]}:{STB+2*nst[0]+1}]"); nst[0] += 1
    def dump_stamps():
        if diag:
            a("s_waitcnt lgkmcnt(0)")
            a("s_lshl_b32 s7, s2, 4")
            a("s_add_u32 s7, s7, s22")
            a("s_lshl_b32 s7, s7, 6")
            a(f"s_add_u32 s7, s7, {WS_STAMP}")
            a("v_mov_b32 v1, s7")
            a("s_mov_b64 exec, 1")
            for i in range(nst[0]):
                a(f"v_mov_b32 v3, s{STB+2*i}")
                a(f"global_store_dword v1, v3, s[20:21] offset:{i*4}")
            a("s_mov_b64 exec, -1")
    def wait_lds(vaddr, off, thresh, vt="v3"):
        l = a.label("W"); e = a.label("WE")
        a(f"{l}:")
        a(f"ds_read_b32 {vt}, {vaddr} offset:{off}")
        a("s_waitcnt lgkmcnt(0)")
        a(f"v_readfirstlane_b32 s7, {vt}")
        a(f"s_cmp_ge_u32 s7, {thresh}")
        a(f"s_cbranch_scc1 {e}")
        a("s_sub_u32 s33, s33, 1")
        a(f"s_cbranch_scc0 {l}")
        a("s_mov_b32 s33, 0")
        a(f"{e}:")
    def arrive(off, rtn=None):
        a("s_mov_b64 exec, 1")
        if rtn: a(f"ds_add_rtn_u32 {rtn}, v10, v11 offset:{off}")
        else:   a(f"ds_add_u32 v10, v11 offset:{off}")
        a("s_mov_b64 exec, -1")

    a("s_cmp_ge_u32 s2, 256")
    a("s_cbranch_scc1 L_end")
    stamp()
    a("s_and_b32 s3, s2, 7          ; x")
    a("s_lshr_b32 s5, s3, 2         ; br")
    a("s_mul_i32 s7, s5, 40")
    a("s_load_dwordx2 s[20:21], s[0:1], 96   ; ws")
    a("s_load_dwordx2 s[18:19], s[0:1], 80   ; out")
    a("s_add_u32 s0, s0, s7")
    a("s_addc_u32 s1, s1, 0")
    a("s_load_dwordx8 s[8:15], s[0:1], 8")
    a("s_load_dwordx2 s[16:17], s[0:1], 0    ; x")
    a("s_lshr_b32 s4, s2, 3         ; j")
    a("s_and_b32 s6, s3, 3          ; g / cq")
    a("v_lshrrev_b32 v1, 6, v0")
    a("v_and_b32 v2, 63, v0         ; lane")
    a("v_readfirstlane_b32 s22, v1  ; wave")
    a("s_mov_b32 s33, 0x400000")
    a("v_lshrrev_b32 v4, 4, v2      ; l>>4")
    a("v_and_b32 v5, 15, v2         ; l&15")
    a("s_cmp_eq_u32 s22, 0")
    a("s_cbranch_scc0 L_compute")

    a("s_setprio 3")
    a("v_lshrrev_b32 v6, 1, v5")
    a("v_xor_b32 v6, v6, v4")
    a("v_lshlrev_b32 v6, 5, v6")
    a("v_and_b32 v7, 1, v2")
    a("v_lshl_add_u32 v6, v7, 4, v6")
    a("v_lshl_add_u32 v12, v4, 13, v6")
    a(f"v_add_u32 v13, {32768-1024}, v12")
    a("v_xor_b32 v14, 128, v12")
    a(f"v_add_u32 v15, {3*(32768-1024)}, v14")
    a(f"v_add_u32 v14, {2*(32768-1024)}, v14")
    a("s_and_b32 s24, s4, 3          ; quarter / s")
    a("s_lshr_b32 s25, s4, 2         ; h1 / b")
    a("s_lshl_b32 s60, s24, 21")
    a("s_lshl_b32 s7, s6, 11")
    a("s_add_u32 s60, s60, s7")
    a("s_lshl_b32 s7, s25, 8")
    a("s_add_u32 s60, s60, s7")
    a(f"s_mov_b32 m0, {SLOTA}")
    a("s_mov_b32 s46, 8388608")
    a("s_mov_b32 s47, 0x20000")
    a("s_waitcnt lgkmcnt(0)")
    a("s_mov_b32 s44, s12")
    a("s_mov_b32 s45, s13")
    stamp()
    state = dict(i=0, prog=0)
    def after_load(Wc):
        i = state["i"]; state["i"] += 1
        if i + 1 >= Wc:
            a(f"s_waitcnt vmcnt({Wc-1})")
            cnt = i + 2 - Wc
            if cnt // 8 > state["prog"]:
                state["prog"] = cnt // 8
                a(f"v_mov_b32 v9, {state['prog']}")
                a("ds_write_b32 v8, v9")
                if state["prog"] % 8 == 0: stamp()
    def setup_rest():
        a(f"v_lshlrev_b32 v8, 2, v2")
        a(f"v_add_u32 v8, {PROG}, v8")
        a(f"v_mov_b32 v10, {CNT}")
        a("v_xor_b32 v16, v5, v4")
        a("v_lshlrev_b32 v16, 4, v16")
        a("v_lshl_add_u32 v16, v4, 8, v16")
        for k in (1, 2, 3): a(f"v_xor_b32 v{16+k}, {k<<6}, v16")
        a("v_lshl_add_u32 v20, v4, 8, v6")
        a("v_xor_b32 v21, 128, v20")
        a("v_lshrrev_b32 v22, 5, v2")
        a("v_bfe_u32 v23, v2, 1, 4")
        a("v_xor_b32 v23, v23, v22")
        a("v_lshlrev_b32 v23, 5, v23")
        a("v_lshl_add_u32 v23, v7, 4, v23")
        a("v_lshl_add_u32 v23, v22, 11, v23")
        for n in range(8):
            x = ((n & 1) << 6) | (((n >> 2) & 1) << 7)
            a(f"v_xor_b32 v{24+n}, {x}, v23")
            if n & 3: a(f"v_add_u32 v{24+n}, {(n&3)*(4096-1024)}, v{24+n}")
        a("s_lshl_b32 s61, s25, 22")
        a("s_lshl_b32 s7, s6, 20")
        a("s_add_u32 s61, s61, s7")
        a("s_lshl_b32 s7, s24, 16")
        a("s_add_u32 s61, s61, s7")
        a(f"s_add_u32 s61, s61, {3072*256}")
        a("s_mov_b32 s62, s61")
        a("s_lshl_b32 s63, s4, 18")
        a("s_lshl_b32 s7, s6, 9")
        a("s_add_u32 s63, s63, s7")
        for d, s, n in ((48, 8, 33554432), (52, 10, 33554432), (56, 14, 8388608)):
            a(f"s_mov_b32 s{d}, s{s}")
            a(f"s_mov_b32 s{d+1}, s{s+1}")
            a(f"s_mov_b32 s{d+2}, {n}")
            a(f"s_mov_b32 s{d+3}, 0x20000")
        a("s_barrier")
    segs = [("s[44:47]", "s60", 131072, SLOTA, lambda n: 12 + (n & 3)),
            ("s[48:51]", "s61", 4096, SLOTB, lambda n: 16 + (n & 3)),
            ("s[52:55]", "s62", 4096, SLOTA, lambda n: 20 + (n & 1)),
            ("s[56:59]", "s63", 16384, SLOTB, lambda n: 24 + (n & 7))]
    for si, (srd, so, step, slot, vr) in enumerate(segs):
        if si == 2: wait_lds("v10", C_WQFREE, 8)
        if si == 3: wait_lds("v10", C_KFREE, 8)
        for n in range(64):
            if n % 4 == 0 and not (si == 0 and n == 0):
                if n == 0:
                    a(f"s_mov_b32 m0, {slot}")
                    a("s_nop 0")
                else:
                    a("s_add_u32 m0, m0, 4096")
                    a(f"s_add_u32 {so}, {so}, {step}")
            off = f" offset:{(n&3)*1024}" if n & 3 else ""
            a(f"buffer_load_dwordx4 v{vr(n)}, {srd}, {so} offen{off}{NT} lds")
            if si == 0 and n == min(W[0], 64) - 2:
                setup_rest()
            after_load(W[si])
    for p in range(state["prog"] + 1, 33):
        a(f"s_waitcnt vmcnt({256 - 8*p})")
        a(f"v_mov_b32 v9, {p}")
        a("ds_write_b32 v8, v9")
        if p % 8 == 0: stamp()
    dump_stamps()
    a("s_endpgm")
    nst_loader = nst[0]

    nst[0] = 1
    a("L_compute:")
    a("s_sub_u32 s23, s22, 1         ; cw")
    a(f"v_mov_b32 v10, {CNT}")
    a("v_mov_b32 v11, 1")
    a(f"v_mov_b32 v9, {PROG}")
    a("s_cmp_eq_u32 s23, 1")
    a("s_cbranch_scc0 L_noinit")
    a("v_lshlrev_b32 v6, 3, v2")
    a(f"v_add_u32 v6, {CNT}, v6")
    a("v_mov_b32 v12, 0")
    a("v_mov_b32 v13, 0")
    a("ds_write_b64 v6, v[12:13]")
    a("L_noinit:")
    a("s_waitcnt lgkmcnt(0)")
    a("s_lshl_b32 s7, s5, 7")
    a("s_load_dword s24, s[20:21], s7")
    a("s_mov_b32 s36, s20")
    a("s_mov_b32 s37, s21")
    a(f"s_mov_b32 s38, {WS_SIZE}")
    a("s_mov_b32 s39, 0x20000")
    a("s_mov_b32 s40, s16")
    a("s_mov_b32 s41, s17")
    a("s_mov_b32 s42, 16384")
    a("s_mov_b32 s43, 0x20000")
    a("s_and_b32 s34, s4, 3          ; quarter / s")
    a("s_lshr_b32 s35, s4, 2         ; h1 / b")
    a("s_cmp_eq_u32 s23, 0")
    a("s_cbranch_scc0 L_nox")
    a("v_lshrrev_b32 v6, 5, v2")
    a("v_and_b32 v7, 31, v2")
    a("v_lshlrev_b32 v12, 1, v6")
    a("v_xor_b32 v7, v7, v12")
    a("v_lshlrev_b32 v7, 4, v7")
    a("v_lshl_add_u32 v7, v6, 11, v7")
    a("s_lshl_b32 s7, s34, 9         ; quarter*512")
    a(f"s_mov_b32 m0, {XIMG}")
    for n in range(4):
        a(f"v_xor_b32 v12, {n<<6}, v7")
        if n: a(f"v_add_u32 v12, {n*(4096-1024)}, v12")
        off = f" offset:{n*1024}" if n else ""
        a(f"buffer_load_dwordx4 v12, s[40:43], s7 offen{off} lds")
    a("L_nox:")
    a("s_barrier")
    a("s_cmp_eq_u32 s23, 0")
    a("s_cbranch_scc0 L_nox2")
    a("s_waitcnt vmcnt(0)")
    arrive(C_XRDY)
    a("L_nox2:")
    a("v_bfe_u32 v6, v2, 2, 2")
    a("v_and_b32 v7, 3, v2")
    a("v_and_b32 v8, 7, v2")
    a("v_and_b32 v12, 1, v4")
    a("v_lshl_or_b32 v12, v12, 2, v6      ; f")
    a("v_xor_b32 v13, s23, v12")
    a("v_lshlrev_b32 v13, 5, v13")
    a("v_lshl_add_u32 v13, v7, 3, v13     ; ((cw^f)<<5) + c*8")
    a("v_lshl_add_u32 v14, v4, 3, v6")
    a("v_lshl_add_u32 v14, v14, 8, v13")
    a("v_lshl_add_u32 v15, v4, 2, v6")
    a("v_lshl_add_u32 v15, v15, 8, v13")
    a("v_lshlrev_b32 v16, 1, v8")
    a("v_xor_b32 v16, v16, v4")
    a("v_lshlrev_b32 v16, 4, v16")
    a("v_lshl_add_u32 v16, v8, 9, v16")
    a(f"v_add_u32 v16, {XIMG}, v16")
    for k in (1, 2, 3): a(f"v_xor_b32 v{16+k}, {k<<6}, v16")
    a("v_lshl_add_u32 v20, v4, 3, v8")
    a("v_lshlrev_b32 v20, 4, v20")
    a(f"v_add_u32 v20, {QIMG}, v20")
    a("s_waitcnt lgkmcnt(0)")
    a("s_add_u32 s24, s24, 0x01010101   ; T")
    a("s_mov_b32 s25, s24")
    a("s_lshr_b32 s26, s24, 8")
    a("s_lshr_b32 s27, s24, 16")
    a("s_lshr_b32 s28, s24, 24")
    for i in range(4): a(f"s_mov_b32 s{29+i}, {0x07060500 + i}")
    a("v_mov_b32 v21, s24             ; vT")
    a("s_and_b32 s44, s24, 255")
    a("s_mul_i32 s44, s44, 0x01010101")
    a("s_mov_b32 s45, s44")
    a("v_cmp_gt_u32 s[46:47], 8, v5")
    def tag4(r):
        for i in range(4): a(f"v_perm_b32 v{r+i}, v{r+i}, v21, s{29+i}")
    def chk4(r, acc, first=False):
        for i in range(4):
            if first and i == 0: a(f"v_xor_b32 {acc}, s25, v{r}")
            else: a(f"v_bitop3_b32 {acc}, v{r+i}, s{25+i}, {acc} bitop3:0xbe")
    def hint_flag(cnt_off, ws_off, which):
        arrive(cnt_off, rtn="v3")
        a("s_waitcnt lgkmcnt(0)")
        a("v_readfirstlane_b32 s7, v3")
        l = a.label("NF")
        a("s_cmp_eq_u32 s7, 7")
        a(f"s_cbranch_scc0 {l}")
        if which == 1:
            a("v_lshlrev_b32 v3, 10, v2")
            a("s_lshl_b32 s7, s3, 7")
        else:
            a("v_lshrrev_b32 v3, 2, v2")
            a("v_lshlrev_b32 v3, 10, v3")
            a("v_lshl_add_u32 v3, v7, 7, v3")
            a("s_lshl_b32 s7, s6, 4")
            a("s_add_u32 s7, s7, s5")
            a("s_lshl_b32 s7, s7, 9")
        a("s_add_u32 s7, s7, s4")
        a(f"s_add_u32 s7, s7, {ws_off}")
        a("s_mov_b64 exec, 0xffffffff")
        a("buffer_store_byte v21, v3, s[36:39], s7 offen sc1")
        a("s_mov_b64 exec, -1")
        a(f"{l}:")
    def hint_wait(ws_off, cnt_off):
        l = a.label("H"); e = a.label("HE"); n = a.label("HN"); o = a.label("HO"); d = a.label("HD")
        a("s_cmp_eq_u32 s23, 0")
        a(f"s_cbranch_scc0 {o}")
        a("s_lshl_b32 s58, s2, 7")
        a(f"s_add_u32 s58, s58, {ws_off}")
        a(f"{l}:")
        a(f"s_load_dwordx8 s[48:55], s[20:21], s58 glc")
        a("s_waitcnt lgkmcnt(0)")
        for i in range(4):
            a(f"s_cmp_eq_u64 s[{48+2*i}:{49+2*i}], s[44:45]")
            a(f"s_cbranch_scc0 {n}")
        a(f"s_branch {e}")
        a(f"{n}:")
        if hint_sleep: a(f"s_sleep {hint_sleep}")
        a("s_sub_u32 s33, s33, 64")
        a(f"s_cbranch_scc0 {l}")
        a("s_mov_b32 s33, 0")
        a(f"{e}:")
        arrive(cnt_off)
        a(f"s_branch {d}")
        a(f"{o}:")
        wait_lds("v10", cnt_off, 1)
        a(f"{d}:")

    stamp()
    wait_lds("v10", C_XRDY, 1)
    for t in range(8):
        a(f"ds_read_b128 v[{32+4*t}:{35+4*t}], v{16+(t&3)} offset:{(t>>2)*256}")
    for t in range(8):
        wait_lds("v9", 0, t + 1)
        a(f"ds_read_b64_tr_b16 v[64:65], v14 offset:{t*8192}")
        a(f"ds_read_b64_tr_b16 v[66:67], v14 offset:{t*8192+1024}")
        a("s_waitcnt lgkmcnt(0)")
        a(f"v_mfma_f32_16x16x32_bf16 v[24:27], v[64:67], v[{32+4*t}:{35+4*t}], {'0' if t == 0 else 'v[24:27]'}")
    arrive(C_WQFREE)
    a("v_lshlrev_b32 v22, 14, v8")
    a("v_lshl_add_u32 v22, v4, 4, v22")
    a("s_lshl_b32 s56, s3, 17")
    a("s_lshl_b32 s7, s34, 12")
    a("s_add_u32 s56, s56, s7")
    a("s_lshl_b32 s7, s35, 9")
    a("s_add_u32 s56, s56, s7")
    a("s_lshl_b32 s7, s23, 6")
    a("s_add_u32 s56, s56, s7")
    a(f"s_add_u32 s56, s56, {WS_QP}")
    tag4(24)
    a("s_mov_b64 exec, s[46:47]")
    a("buffer_store_dwordx4 v[24:27], v22, s[36:39], s56 offen sc1")
    a("s_mov_b64 exec, -1")
    hint_flag(C_QPUB, WS_F1, 1)
    stamp()
    a("s_add_u32 s57, s23, 9")
    wait_lds("v9", 0, "s57")
    a("v_xor_b32 v22, v4, v5")
    a("v_lshlrev_b32 v22, 4, v22")
    a("v_lshl_add_u32 v22, v5, 8, v22")
    a("s_lshl_b32 s7, s23, 13")
    a(f"s_add_u32 s7, s7, {SLOTB}")
    a("v_add_u32 v22, s7, v22")
    for kk in range(4):
        if kk: a(f"v_xor_b32 v23, {kk<<6}, v22")
        for t in range(2):
            a(f"ds_read_b128 v[{32+16*t+4*kk}:{35+16*t+4*kk}], {'v23' if kk else 'v22'} offset:{t*4096}")
    a("s_waitcnt lgkmcnt(0)")
    arrive(C_KFREE)
    stamp()
    hint_wait(WS_F1, C_H1)
    stamp()
    a("v_lshrrev_b32 v22, 5, v2")
    a("v_lshlrev_b32 v22, 12, v22")
    a("v_and_b32 v23, 31, v2")
    a("v_lshl_add_u32 v22, v23, 4, v22")
    a("s_lshl_b32 s56, s3, 17")
    a("s_lshl_b32 s7, s35, 14")
    a("s_add_u32 s56, s56, s7")
    a("s_lshl_b32 s7, s23, 9")
    a("s_add_u32 s56, s56, s7")
    a(f"s_add_u32 s56, s56, {WS_QP}")
    a("s_add_u32 s57, s56, 8192")
    a("L_qg:")
    a("buffer_load_dwordx4 v[64:67], v22, s[36:39], s56 offen sc1")
    a("buffer_load_dwordx4 v[68:71], v22, s[36:39], s57 offen sc1")
    a("s_waitcnt vmcnt(0)")
    chk4(64, "v3", True); chk4(68, "v3")
    a("v_and_b32 v3, 255, v3")
    a("v_cmp_ne_u32 vcc, 0, v3")
    a("s_cbranch_vccz L_qok")
    a("s_sub_u32 s33, s33, 256")
    a("s_cbranch_scc0 L_qg")
    a("s_mov_b32 s33, 0")
    a("L_qok:")
    for i in range(4): a(f"v_add_f32 v{64+i}, v{64+i}, v{68+i}")
    for i in range(4): a(f"v_mov_b32 v{68+i}, v{64+i}")
    a("s_nop 1")
    for i in range(4): a(f"v_permlane32_swap_b32 v{64+i}, v{68+i}")
    a("s_nop 1")
    for i in range(4): a(f"v_add_f32 v{64+i}, v{64+i}, v{68+i}")
    a("v_cvt_pk_bf16_f32 v64, v64, v65")
    a("v_cvt_pk_bf16_f32 v65, v66, v67")
    a("v_lshrrev_b32 v22, 1, v23")
    a("v_lshlrev_b32 v22, 7, v22")
    a("v_and_b32 v3, 1, v23")
    a("v_lshl_add_u32 v22, v3, 3, v22")
    a("s_lshl_b32 s7, s23, 4")
    a(f"s_add_u32 s7, s7, {QIMG}")
    a("v_add_u32 v22, s7, v22")
    a("s_mov_b64 exec, 0xffffffff")
    a("ds_write_b64 v22, v[64:65]")
    a("s_mov_b64 exec, -1")
    a("s_waitcnt lgkmcnt(0)")
    arrive(C_QRDY)
    wait_lds("v10", C_QRDY, 8)
    stamp()
    for kk in range(4): a(f"ds_read_b128 v[{64+4*kk}:{67+4*kk}], v20 offset:{kk*512}")
    for kk in range(4):
        a(f"s_waitcnt lgkmcnt({3-kk})")
        for t in range(2):
            a(f"v_mfma_f32_16x16x32_bf16 v[{24+4*t}:{27+4*t}], v[{32+16*t+4*kk}:{35+16*t+4*kk}], v[{64+4*kk}:{67+4*kk}], {'0' if kk == 0 else f'v[{24+4*t}:{27+4*t}]'}")
    SC = (128 ** -0.5) * math.log2(math.e)
    a(f"s_mov_b32 s59, {f32(SC)}")
    a("v_lshlrev_b32 v22, 5, v8")
    a(f"v_add_u32 v22, {MAXB}, v22")
    a("s_lshl_b32 s7, s23, 2")
    a("v_add_u32 v23, s7, v22")
    a("s_nop 4")
    a("v_max3_f32 v64, v24, v25, v26")
    a("v_max3_f32 v64, v64, v27, v28")
    a("v_max3_f32 v64, v64, v29, v30")
    a("v_max_f32 v64, v64, v31")
    def xreduce(op, r, t):
        a(f"v_mov_b32 {t}, {r}")
        a("s_nop 1")
        a(f"v_permlane32_swap_b32 {r}, {t}")
        a("s_nop 1")
        a(f"{op} {r}, {r}, {t}")
        a(f"v_mov_b32 {t}, {r}")
        a("s_nop 1")
        a(f"v_permlane16_swap_b32 {r}, {t}")
        a("s_nop 1")
        a(f"{op} {r}, {r}, {t}")
    xreduce("v_max_f32", "v64", "v65")
    a("s_mov_b64 exec, 0xff")
    a("ds_write_b32 v23, v64")
    a("s_mov_b64 exec, -1")
    a("s_waitcnt lgkmcnt(0)")
    arrive(C_MRDY)
    wait_lds("v10", C_MRDY, 8)
    a("ds_read_b128 v[64:67], v22")
    a("ds_read_b128 v[68:71], v22 offset:16")
    a("s_waitcnt lgkmcnt(0)")
    a("v_max3_f32 v64, v64, v65, v66")
    a("v_max3_f32 v64, v64, v67, v68")
    a("v_max3_f32 v64, v64, v69, v70")
    a("v_max_f32 v64, v64, v71")
    a("v_mul_f32 v72, s59, v64")
    a("v_perm_b32 v72, v72, v21, s29")
    for i in range(8): a(f"v_fma_f32 v{24+i}, v{24+i}, s59, -v72")
    for i in range(8): a(f"v_exp_f32 v{24+i}, v{24+i}")
    a("s_nop 0")
    for i in range(4): a(f"v_cvt_pk_bf16_f32 v{64+i}, v{24+2*i}, v{25+2*i}")
    a("v_add_f32 v24, v24, v25")
    a("v_add_f32 v26, v26, v27")
    a("v_add_f32 v28, v28, v29")
    a("v_add_f32 v30, v30, v31")
    a("v_add_f32 v24, v24, v26")
    a("v_add_f32 v28, v28, v30")
    a("v_add_f32 v24, v24, v28")
    a("s_lshl_b32 s7, s23, 9")
    a(f"s_add_u32 s7, s7, {PIMG - QIMG}")
    a("v_add_u32 v3, s7, v20")
    a("s_mov_b64 exec, s[46:47]")
    a("ds_write_b128 v3, v[64:67]")
    a("s_mov_b64 exec, -1")
    xreduce("v_add_f32", "v24", "v25")
    a("s_mov_b64 exec, 0xff")
    a(f"ds_write_b32 v23, v24 offset:{SUMB-MAXB}")
    a("s_mov_b64 exec, -1")
    a("s_waitcnt lgkmcnt(0)")
    arrive(C_PRDY)
    wait_lds("v10", C_PRDY, 8)
    for t in range(8): a(f"ds_read_b128 v[{32+4*t}:{35+4*t}], v20 offset:{PIMG-QIMG+t*512}")
    a("s_cmp_eq_u32 s23, 0")
    a("s_cbranch_scc0 L_noml")
    a(f"ds_read_b128 v[64:67], v22 offset:{SUMB-MAXB}")
    a(f"ds_read_b128 v[68:71], v22 offset:{SUMB-MAXB+16}")
    a("s_waitcnt lgkmcnt(0)")
    for i in range(4): a(f"v_add_f32 v{64+i}, v{64+i}, v{68+i}")
    a("v_add_f32 v64, v64, v65")
    a("v_add_f32 v66, v66, v67")
    a("v_add_f32 v65, v64, v66")
    a("v_mov_b32 v64, v72")
    a("v_mov_b32 v66, v72")
    a("v_mov_b32 v67, v65")
    tag4(64)
    a("v_lshlrev_b32 v3, 9, v8          ; h*512")
    a("s_lshl_b32 s56, s3, 12")
    a("s_lshl_b32 s7, s4, 4")
    a("s_add_u32 s56, s56, s7")
    a(f"s_add_u32 s56, s56, {WS_ML}")
    a("s_mov_b64 exec, 0xff")
    a("buffer_store_dwordx4 v[64:67], v3, s[36:39], s56 offen sc1")
    a("s_mov_b64 exec, -1")
    a("L_noml:")
    a("v_lshlrev_b32 v22, 14, v8")
    a("v_lshl_add_u32 v22, v4, 4, v22")
    a("s_lshl_b32 s56, s3, 17")
    a("s_lshl_b32 s7, s4, 9")
    a("s_add_u32 s56, s56, s7")
    a("s_lshl_b32 s7, s23, 6")
    a("s_add_u32 s56, s56, s7")
    a(f"s_add_u32 s56, s56, {WS_OP}")
    stamp()
    for t in range(8):
        wait_lds("v9", 0, 17 + t)
        a(f"ds_read_b64_tr_b16 v[64:65], v15 offset:{t*8192}")
        a(f"ds_read_b64_tr_b16 v[66:67], v15 offset:{t*8192+4096}")
        a("s_waitcnt lgkmcnt(0)")
        a(f"v_mfma_f32_16x16x32_bf16 v[24:27], v[64:67], v[{32+4*t}:{35+4*t}], {'0' if t == 0 else 'v[24:27]'}")
    a("s_nop 7")
    tag4(24)
    a("s_mov_b64 exec, s[46:47]")
    a("buffer_store_dwordx4 v[24:27], v22, s[36:39], s56 offen sc1")
    a("s_mov_b64 exec, -1")
    hint_flag(C_OPUB, WS_F2, 2)
    stamp()
    a("s_lshl_b32 s7, s23, 1")
    a("v_xor_b32 v14, s7, v12")
    a("v_lshlrev_b32 v14, 5, v14")
    a("v_lshl_add_u32 v14, v7, 3, v14")
    a("v_lshl_add_u32 v15, v4, 3, v6")
    a("v_lshl_add_u32 v14, v15, 9, v14")
    a(f"v_add_u32 v14, {SLOTB}, v14")
    a("v_xor_b32 v15, 32, v14")
    a("v_lshlrev_b32 v19, 10, v8")
    a("v_lshl_add_u32 v19, v4, 4, v19")
    a("v_bfe_u32 v3, v2, 3, 1")
    a("v_lshl_add_u32 v19, v3, 6, v19")
    a("s_lshl_b32 s60, s3, 5")
    a("s_add_u32 s60, s60, s4")
    a("s_lshl_b32 s60, s60, 13")
    a("s_lshl_b32 s7, s23, 7")
    a("s_add_u32 s60, s60, s7")
    a(f"s_add_u32 s60, s60, {WS_FP}")
    a("s_cmp_lt_u32 s23, 4")
    a("s_cbranch_scc0 L_nogather")
    a("s_lshl_b32 s57, s5, 5")
    a("s_add_u32 s57, s57, s4          ; x3*8 + h3")
    a("v_lshrrev_b32 v16, 3, v2        ; b")
    a("v_lshlrev_b32 v17, 11, v16")
    a("v_lshl_add_u32 v17, v8, 4, v17   ; b*2048 + p*16")
    a("v_lshlrev_b32 v18, 6, v16")
    a("v_lshl_add_u32 v18, v7, 4, v18   ; (b*4+s)*16")
    a("s_lshl_b32 s61, s57, 14")
    a("s_lshl_b32 s7, s23, 7")
    a("s_add_u32 s61, s61, s7")
    a(f"s_add_u32 s61, s61, {WS_OP}")
    a("s_lshl_b32 s62, s57, 9")
    a(f"s_add_u32 s62, s62, {WS_ML}")
    a("v_lshrrev_b32 v22, 1, v8")
    a("v_lshl_add_u32 v22, v22, 3, v16")
    a("v_lshlrev_b32 v22, 4, v22")
    a("v_and_b32 v3, 1, v2")
    a("v_lshl_add_u32 v22, v3, 3, v22")
    a("s_lshl_b32 s7, s23, 9")
    a(f"s_add_u32 s7, s7, {OIMG}")
    a("v_add_u32 v22, s7, v22")
    hint_wait(WS_F2, C_H2)
    stamp()
    a("L_og:")
    a("buffer_load_dwordx4 v[80:83], v18, s[36:39], s62 offen sc1")
    for s in range(4):
        off = f" offset:{s*512}" if s else ""
        a(f"buffer_load_dwordx4 v[{64+4*s}:{67+4*s}], v17, s[36:39], s61 offen{off} sc1")
    a("s_waitcnt vmcnt(4)")
    chk4(80, "v3", True)
    a("v_max_f32_dpp v82, v80, v80 quad_perm:[1,0,3,2] row_mask:0xf bank_mask:0xf")
    a("s_nop 1")
    a("v_max_f32_dpp v82, v82, v82 quad_perm:[2,3,0,1] row_mask:0xf bank_mask:0xf")
    a("v_sub_f32 v80, v80, v82")
    a("v_exp_f32 v80, v80")
    a("s_nop 0")
    a("v_mul_f32 v81, v81, v80")
    a("s_nop 1")
    a("v_add_f32_dpp v81, v81, v81 quad_perm:[1,0,3,2] row_mask:0xf bank_mask:0xf")
    a("s_nop 1")
    a("v_add_f32_dpp v81, v81, v81 quad_perm:[2,3,0,1] row_mask:0xf bank_mask:0xf")
    a("v_rcp_f32 v81, v81")
    a("s_nop 0")
    a("v_mul_f32 v80, v80, v81")
    a("s_waitcnt vmcnt(0)")
    for s in range(4): chk4(64 + 4*s, "v3")
    a("v_and_b32 v3, 255, v3")
    a("v_cmp_ne_u32 vcc, 0, v3")
    a("s_cbranch_vccz L_ook")
    a("s_sub_u32 s33, s33, 256")
    a("s_cbranch_scc0 L_og")
    a("s_mov_b32 s33, 0")
    a("L_ook:")
    for i in range(4): a(f"v_mul_f32_dpp v{64+i}, v80, v{64+i} quad_perm:[0,0,0,0] row_mask:0xf bank_mask:0xf")
    for s in range(1, 4):
        for i in range(4): a(f"v_fmac_f32_dpp v{64+i}, v80, v{64+4*s+i} quad_perm:[{s},{s},{s},{s}] row_mask:0xf bank_mask:0xf")
    a("v_cvt_pk_bf16_f32 v64, v64, v65")
    a("v_cvt_pk_bf16_f32 v65, v66, v67")
    a("ds_write_b64 v22, v[64:65]")
    a("s_waitcnt lgkmcnt(0)")
    arrive(C_ORDY)
    if diag:
        a("s_branch L_g2")
    a("L_nogather:")
    if diag:
        nst[0] -= 1
        stamp()
        a("L_g2:")
    stamp()
    for t in range(4):
        wait_lds("v9", 0, 26 + 2*t)
        for u in range(2):
            for hf in range(2):
                r = 32 + (t*2+u)*4 + hf*2
                a(f"ds_read_b64_tr_b16 v[{r}:{r+1}], v{14+u} offset:{t*16384 + hf*2048}")
    stamp()
    wait_lds("v10", C_ORDY, 4)
    for t in range(4): a(f"ds_read_b128 v[{64+4*t}:{67+4*t}], v20 offset:{OIMG-QIMG+t*512}")
    for t in range(4):
        a(f"s_waitcnt lgkmcnt({3-t})")
        for u in range(2):
            r = 32 + (t*2+u)*4
            a(f"v_mfma_f32_16x16x32_bf16 v[{24+4*u}:{27+4*u}], v[{r}:{r+3}], v[{64+4*t}:{67+4*t}], {'0' if t == 0 else f'v[{24+4*u}:{27+4*u}]'}")
    a("v_lshlrev_b32 v16, 13, v4")
    a("v_lshl_add_u32 v16, v5, 4, v16    ; c4*8192 + piece*16")
    a("s_lshl_b32 s61, s3, 18")
    a("s_lshl_b32 s7, s35, 10")
    a("s_add_u32 s61, s61, s7")
    a("s_lshl_b32 s7, s34, 8")
    a("s_add_u32 s61, s61, s7")
    a(f"s_add_u32 s61, s61, {WS_FP}")
    for i in range(4): a(f"v_cndmask_b32 v{24+i}, v{28+i}, v{24+i}, s[46:47]")
    tag4(24)
    a("buffer_store_dwordx4 v[24:27], v19, s[36:39], s60 offen sc1")
    stamp()
    a("s_cmp_eq_u32 s23, 0")
    a("s_cbranch_scc0 L_fin")
    a("s_mov_b32 s40, s18")
    a("s_mov_b32 s41, s19")
    a("s_mov_b32 s42, 32768")
    for i in range(1, 8): a(f"s_add_u32 s{61+i}, s61, {i*32768}")
    a("s_lshl_b32 s56, s35, 12")
    a("s_lshl_b32 s7, s3, 9")
    a("s_add_u32 s56, s56, s7")
    a("s_lshl_b32 s7, s34, 7")
    a("s_add_u32 s56, s56, s7")
    a("v_lshlrev_b32 v17, 3, v5")
    a("L_fg:")
    for i in range(8): a(f"buffer_load_dwordx4 v[{32+4*i}:{35+4*i}], v16, s[36:39], s{61+i} offen sc1")
    for i in range(8):
        a(f"s_waitcnt vmcnt({7-i})")
        chk4(32 + 4*i, "v3", i == 0)
        if i:
            for k in range(4): a(f"v_add_f32 v{24+k}, v{24+k}, v{32+4*i+k}")
        else:
            for k in range(4): a(f"v_mov_b32 v{24+k}, v{32+k}")
    a("v_and_b32 v3, 255, v3")
    a("v_cmp_ne_u32 vcc, 0, v3")
    a("s_cbranch_vccz L_fok")
    a("s_sub_u32 s33, s33, 256")
    a("s_cbranch_scc0 L_fg")
    a("s_mov_b32 s33, 0")
    a("L_fok:")
    for sw in ("v_permlane32_swap_b32", "v_permlane16_swap_b32"):
        for k in range(4): a(f"v_mov_b32 v{28+k}, v{24+k}")
        a("s_nop 1")
        for k in range(4): a(f"{sw} v{24+k}, v{28+k}")
        a("s_nop 1")
        for k in range(4): a(f"v_add_f32 v{24+k}, v{24+k}, v{28+k}")
    a("v_cvt_pk_bf16_f32 v24, v24, v25")
    a("v_cvt_pk_bf16_f32 v25, v26, v27")
    a("s_mov_b64 exec, 0xffff")
    a("buffer_store_dwordx2 v[24:25], v17, s[40:43], s56 offen")
    a("s_and_b32 s7, s2, 0xfb")
    a("s_cmp_eq_u32 s7, 0")
    a("s_cbranch_scc0 L_noep")
    a("s_lshl_b32 s7, s5, 7")
    a("v_mov_b32 v3, 0")
    a("s_mov_b64 exec, 1")
    a("buffer_store_dword v21, v3, s[36:39], s7 offen")
    a("L_noep:")
    a("s_mov_b64 exec, -1")
    if diag:
        a("s_waitcnt vmcnt(0)")
    a("L_fin:")
    stamp()
    dump_stamps()
    a("L_end:")
    a("s_endpgm")
    return wrap(a.text(), 256, 576, LDS_BYTES, 84), nst_loader, nst[0]

if __name__ == "__main__":
    kw = eval("dict(" + (sys.argv[2] if len(sys.argv) > 2 else "") + ")")
    t, n1, n2 = gen(**kw)
    open(sys.argv[1], "w").write(t)
    print("stamps", n1, n2, "lines", t.count("\n"))
```

```python
import sys, math, struct
from asmlib import *

SLOTA, SLOTB = 0, 65536
XIMG, QIMG, PIMG, OIMG = 131072, 135168, 137216, 141312
MAXB, SUMB, CNT, PROG = 143360, 143616, 143872, 144128
LDS_BYTES = 144384
C_XRDY, C_WQFREE, C_KFREE, C_QPUB, C_QRDY, C_MRDY, C_PRDY, C_OPUB, C_ORDY, C_H1, C_H2 = [4*i for i in range(11)]
WS_EPOCH, WS_F1, WS_F2 = 0, 0x10000, 0x20000
WS_QP, WS_OP, WS_ML, WS_FP = 0x100000, 0x200000, 0x300000, 0x400000
WS_SIZE = 0x600000
WS_STAMP = 0x800000

def f32(x): return struct.unpack("<I", struct.pack("<f", x))[0]

def gen(W=(32, 32, 32, 32), diag=False, nt="nt", hint_sleep=2, padto=0):
    a = Asm()
    NT = (" " + nt) if nt else ""
    nst = [0]
    STB = 70
    def stamp():
        if diag:
            assert nst[0] < 16
            a(f"s_memrealtime s[{STB+2*nst[0]}:{STB+2*nst[0]+1}]"); nst[0] += 1
    def dump_stamps():
        if diag:
            a("s_waitcnt lgkmcnt(0)")
            a("s_lshl_b32 s7, s2, 4")
            a("s_add_u32 s7, s7, s22")
            a("s_lshl_b32 s7, s7, 6")
            a(f"s_add_u32 s7, s7, {WS_STAMP}")
            a("v_mov_b32 v1, s7")
            a("s_mov_b64 exec, 1")
            for i in range(nst[0]):
                a(f"v_mov_b32 v3, s{STB+2*i}")
                a(f"global_store_dword v1, v3, s[20:21] offset:{i*4}")
            a("s_mov_b64 exec, -1")
    def wait_lds(vaddr, off, thresh, vt="v3"):
        l = a.label("W"); e = a.label("WE")
        a(f"{l}:")
        a(f"ds_read_b32 {vt}, {vaddr} offset:{off}")
        a("s_waitcnt lgkmcnt(0)")
        a(f"v_readfirstlane_b32 s7, {vt}")
        a(f"s_cmp_ge_u32 s7, {thresh}")
        a(f"s_cbranch_scc1 {e}")
        a("s_sub_u32 s33, s33, 1")
        a(f"s_cbranch_scc0 {l}")
        a("s_mov_b32 s33, 0")
        a(f"{e}:")
    def arrive(off, rtn=None):
        a("s_mov_b64 exec, 1")
        if rtn: a(f"ds_add_rtn_u32 {rtn}, v10, v11 offset:{off}")
        else:   a(f"ds_add_u32 v10, v11 offset:{off}")
        a("s_mov_b64 exec, -1")

    a("s_cmp_ge_u32 s2, 256")
    a("s_cbranch_scc1 L_end")
    if padto: a("s_memrealtime s[98:99]")
    stamp()
    a("s_and_b32 s3, s2, 7          ; x")
    a("s_lshr_b32 s5, s3, 2         ; br")
    a("s_mul_i32 s7, s5, 40")
    a("s_load_dwordx2 s[20:21], s[0:1], 96   ; ws")
    a("s_load_dwordx2 s[18:19], s[0:1], 80   ; out")
    a("s_add_u32 s0, s0, s7")
    a("s_addc_u32 s1, s1, 0")
    a("s_load_dwordx8 s[8:15], s[0:1], 8")
    a("s_load_dwordx2 s[16:17], s[0:1], 0    ; x")
    a("s_lshr_b32 s4, s2, 3         ; j")
    a("s_and_b32 s6, s3, 3          ; g / cq")
    a("v_lshrrev_b32 v1, 6, v0")
    a("v_and_b32 v2, 63, v0         ; lane")
    a("v_readfirstlane_b32 s22, v1  ; wave")
    a("s_mov_b32 s33, 0x400000")
    a("v_lshrrev_b32 v4, 4, v2      ; l>>4")
    a("v_and_b32 v5, 15, v2         ; l&15")
    a("s_cmp_eq_u32 s22, 0")
    a("s_cbranch_scc0 L_compute")

    a("s_setprio 3")
    a("v_lshrrev_b32 v6, 1, v5")
    a("v_xor_b32 v6, v6, v4")
    a("v_lshlrev_b32 v6, 5, v6")
    a("v_and_b32 v7, 1, v2")
    a("v_lshl_add_u32 v6, v7, 4, v6")
    a("v_lshl_add_u32 v12, v4, 13, v6")
    a(f"v_add_u32 v13, {32768-1024}, v12")
    a("v_xor_b32 v14, 128, v12")
    a(f"v_add_u32 v15, {3*(32768-1024)}, v14")
    a(f"v_add_u32 v14, {2*(32768-1024)}, v14")
    a("s_and_b32 s24, s4, 3          ; quarter / s")
    a("s_lshr_b32 s25, s4, 2         ; h1 / b")
    a("s_lshl_b32 s60, s24, 21")
    a("s_lshl_b32 s7, s6, 11")
    a("s_add_u32 s60, s60, s7")
    a("s_lshl_b32 s7, s25, 8")
    a("s_add_u32 s60, s60, s7")
    a(f"s_mov_b32 m0, {SLOTA}")
    a("s_mov_b32 s46, 8388608")
    a("s_mov_b32 s47, 0x20000")
    a("s_waitcnt lgkmcnt(0)")
    a("s_mov_b32 s44, s12")
    a("s_mov_b32 s45, s13")
    stamp()
    state = dict(i=0, prog=0)
    def after_load(Wc):
        i = state["i"]; state["i"] += 1
        if i + 1 >= Wc:
            a(f"s_waitcnt vmcnt({Wc-1})")
            cnt = i + 2 - Wc
            if cnt // 8 > state["prog"]:
                state["prog"] = cnt // 8
                a(f"v_mov_b32 v9, {state['prog']}")
                a("ds_write_b32 v8, v9")
                if state["prog"] % 8 == 0: stamp()
    def setup_rest():
        a(f"v_lshlrev_b32 v8, 2, v2")
        a(f"v_add_u32 v8, {PROG}, v8")
        a(f"v_mov_b32 v10, {CNT}")
        a("v_xor_b32 v16, v5, v4")
        a("v_lshlrev_b32 v16, 4, v16")
        a("v_lshl_add_u32 v16, v4, 8, v16")
        for k in (1, 2, 3): a(f"v_xor_b32 v{16+k}, {k<<6}, v16")
        a("v_lshl_add_u32 v20, v4, 8, v6")
        a("v_xor_b32 v21, 128, v20")
        a("v_lshrrev_b32 v22, 5, v2")
        a("v_bfe_u32 v23, v2, 1, 4")
        a("v_xor_b32 v23, v23, v22")
        a("v_lshlrev_b32 v23, 5, v23")
        a("v_lshl_add_u32 v23, v7, 4, v23")
        a("v_lshl_add_u32 v23, v22, 11, v23")
        for n in range(8):
            x = ((n & 1) << 6) | (((n >> 2) & 1) << 7)
            a(f"v_xor_b32 v{24+n}, {x}, v23")
            if n & 3: a(f"v_add_u32 v{24+n}, {(n&3)*(4096-1024)}, v{24+n}")
        a("s_lshl_b32 s61, s25, 22")
        a("s_lshl_b32 s7, s6, 20")
        a("s_add_u32 s61, s61, s7")
        a("s_lshl_b32 s7, s24, 16")
        a("s_add_u32 s61, s61, s7")
        a(f"s_add_u32 s61, s61, {3072*256}")
        a("s_mov_b32 s62, s61")
        a("s_lshl_b32 s63, s4, 18")
        a("s_lshl_b32 s7, s6, 9")
        a("s_add_u32 s63, s63, s7")
        for d, s, n in ((48, 8, 33554432), (52, 10, 33554432), (56, 14, 8388608)):
            a(f"s_mov_b32 s{d}, s{s}")
            a(f"s_mov_b32 s{d+1}, s{s+1}")
            a(f"s_mov_b32 s{d+2}, {n}")
            a(f"s_mov_b32 s{d+3}, 0x20000")
        a("s_barrier")
    segs = [("s[44:47]", "s60", 131072, SLOTA, lambda n: 12 + (n & 3)),
            ("s[48:51]", "s61", 4096, SLOTB, lambda n: 16 + (n & 3)),
            ("s[52:55]", "s62", 4096, SLOTA, lambda n: 20 + (n & 1)),
            ("s[56:59]", "s63", 16384, SLOTB, lambda n: 24 + (n & 7))]
    for si, (srd, so, step, slot, vr) in enumerate(segs):
        if si == 2: wait_lds("v10", C_WQFREE, 8)
        if si == 3: wait_lds("v10", C_KFREE, 8)
        for n in range(64):
            if n % 4 == 0 and not (si == 0 and n == 0):
                if n == 0:
                    a(f"s_mov_b32 m0, {slot}")
                    a("s_nop 0")
                else:
                    a("s_add_u32 m0, m0, 4096")
                    a(f"s_add_u32 {so}, {so}, {step}")
            off = f" offset:{(n&3)*1024}" if n & 3 else ""
            a(f"buffer_load_dwordx4 v{vr(n)}, {srd}, {so} offen{off}{NT} lds")
            if si == 0 and n == min(W[0], 64) - 2:
                setup_rest()
            after_load(W[si])
    for p in range(state["prog"] + 1, 33):
        a(f"s_waitcnt vmcnt({256 - 8*p})")
        a(f"v_mov_b32 v9, {p}")
        a("ds_write_b32 v8, v9")
        if p % 8 == 0: stamp()
    dump_stamps()
    a("s_endpgm")
    nst_loader = nst[0]

    nst[0] = 1
    a("L_compute:")
    a("s_sub_u32 s23, s22, 1         ; cw")
    a(f"v_mov_b32 v10, {CNT}")
    a("v_mov_b32 v11, 1")
    a(f"v_mov_b32 v9, {PROG}")
    a("s_cmp_eq_u32 s23, 1")
    a("s_cbranch_scc0 L_noinit")
    a("v_lshlrev_b32 v6, 3, v2")
    a(f"v_add_u32 v6, {CNT}, v6")
    a("v_mov_b32 v12, 0")
    a("v_mov_b32 v13, 0")
    a("ds_write_b64 v6, v[12:13]")
    a("L_noinit:")
    a("s_waitcnt lgkmcnt(0)")
    a("s_lshl_b32 s7, s5, 7")
    a("s_load_dword s24, s[20:21], s7")
    a("s_mov_b32 s36, s20")
    a("s_mov_b32 s37, s21")
    a(f"s_mov_b32 s38, {WS_SIZE}")
    a("s_mov_b32 s39, 0x20000")
    a("s_mov_b32 s40, s16")
    a("s_mov_b32 s41, s17")
    a("s_mov_b32 s42, 16384")
    a("s_mov_b32 s43, 0x20000")
    a("s_and_b32 s34, s4, 3          ; quarter / s")
    a("s_lshr_b32 s35, s4, 2         ; h1 / b")
    a("s_cmp_eq_u32 s23, 0")
    a("s_cbranch_scc0 L_nox")
    a("v_lshrrev_b32 v6, 5, v2")
    a("v_and_b32 v7, 31, v2")
    a("v_lshlrev_b32 v12, 1, v6")
    a("v_xor_b32 v7, v7, v12")
    a("v_lshlrev_b32 v7, 4, v7")
    a("v_lshl_add_u32 v7, v6, 11, v7")
    a("s_lshl_b32 s7, s34, 9         ; quarter*512")
    a(f"s_mov_b32 m0, {XIMG}")
    for n in range(4):
        a(f"v_xor_b32 v12, {n<<6}, v7")
        if n: a(f"v_add_u32 v12, {n*(4096-1024)}, v12")
        off = f" offset:{n*1024}" if n else ""
        a(f"buffer_load_dwordx4 v12, s[40:43], s7 offen{off} lds")
    a("L_nox:")
    a("s_barrier")
    a("s_cmp_eq_u32 s23, 0")
    a("s_cbranch_scc0 L_nox2")
    a("s_waitcnt vmcnt(0)")
    arrive(C_XRDY)
    a("L_nox2:")
    a("v_bfe_u32 v6, v2, 2, 2")
    a("v_and_b32 v7, 3, v2")
    a("v_and_b32 v8, 7, v2")
    a("v_and_b32 v12, 1, v4")
    a("v_lshl_or_b32 v12, v12, 2, v6      ; f")
    a("v_xor_b32 v13, s23, v12")
    a("v_lshlrev_b32 v13, 5, v13")
    a("v_lshl_add_u32 v13, v7, 3, v13     ; ((cw^f)<<5) + c*8")
    a("v_lshl_add_u32 v14, v4, 3, v6")
    a("v_lshl_add_u32 v14, v14, 8, v13")
    a("v_lshl_add_u32 v15, v4, 2, v6")
    a("v_lshl_add_u32 v15, v15, 8, v13")
    a("v_lshlrev_b32 v16, 1, v8")
    a("v_xor_b32 v16, v16, v4")
    a("v_lshlrev_b32 v16, 4, v16")
    a("v_lshl_add_u32 v16, v8, 9, v16")
    a(f"v_add_u32 v16, {XIMG}, v16")
    for k in (1, 2, 3): a(f"v_xor_b32 v{16+k}, {k<<6}, v16")
    a("v_lshl_add_u32 v20, v4, 3, v8")
    a("v_lshlrev_b32 v20, 4, v20")
    a(f"v_add_u32 v20, {QIMG}, v20")
    a("s_waitcnt lgkmcnt(0)")
    a("s_add_u32 s24, s24, 0x01010101   ; T")
    a("s_mov_b32 s25, s24")
    a("s_lshr_b32 s26, s24, 8")
    a("s_lshr_b32 s27, s24, 16")
    a("s_lshr_b32 s28, s24, 24")
    for i in range(4): a(f"s_mov_b32 s{29+i}, {0x07060500 + i}")
    a("v_mov_b32 v21, s24             ; vT")
    a("s_and_b32 s44, s24, 255")
    a("s_mul_i32 s44, s44, 0x01010101")
    a("s_mov_b32 s45, s44")
    a("v_cmp_gt_u32 s[46:47], 8, v5")
    def tag4(r):
        for i in range(4): a(f"v_perm_b32 v{r+i}, v{r+i}, v21, s{29+i}")
    def chk4(r, acc, first=False):
        for i in range(4):
            if first and i == 0: a(f"v_xor_b32 {acc}, s25, v{r}")
            else: a(f"v_bitop3_b32 {acc}, v{r+i}, s{25+i}, {acc} bitop3:0xbe")
    def hint_flag(cnt_off, ws_off, which):
        arrive(cnt_off, rtn="v3")
        a("s_waitcnt lgkmcnt(0)")
        a("v_readfirstlane_b32 s7, v3")
        l = a.label("NF")
        a("s_cmp_eq_u32 s7, 7")
        a(f"s_cbranch_scc0 {l}")
        if which == 1:
            a("v_lshlrev_b32 v3, 10, v2")
            a("s_lshl_b32 s7, s3, 7")
        else:
            a("v_lshrrev_b32 v3, 2, v2")
            a("v_lshlrev_b32 v3, 10, v3")
            a("v_lshl_add_u32 v3, v7, 7, v3")
            a("s_lshl_b32 s7, s6, 4")
            a("s_add_u32 s7, s7, s5")
            a("s_lshl_b32 s7, s7, 9")
        a("s_add_u32 s7, s7, s4")
        a(f"s_add_u32 s7, s7, {ws_off}")
        a("s_mov_b64 exec, 0xffffffff")
        a("buffer_store_byte v21, v3, s[36:39], s7 offen sc1")
        a("s_mov_b64 exec, -1")
        a(f"{l}:")
    def hint_wait(ws_off, cnt_off):
        l = a.label("H"); e = a.label("HE"); n = a.label("HN"); o = a.label("HO"); d = a.label("HD")
        a("s_cmp_eq_u32 s23, 0")
        a(f"s_cbranch_scc0 {o}")
        a("s_lshl_b32 s58, s2, 7")
        a(f"s_add_u32 s58, s58, {ws_off}")
        a(f"{l}:")
        a(f"s_load_dwordx8 s[48:55], s[20:21], s58 glc")
        a("s_waitcnt lgkmcnt(0)")
        for i in range(4):
            a(f"s_cmp_eq_u64 s[{48+2*i}:{49+2*i}], s[44:45]")
            a(f"s_cbranch_scc0 {n}")
        a(f"s_branch {e}")
        a(f"{n}:")
        if hint_sleep: a(f"s_sleep {hint_sleep}")
        a("s_sub_u32 s33, s33, 64")
        a(f"s_cbranch_scc0 {l}")
        a("s_mov_b32 s33, 0")
        a(f"{e}:")
        arrive(cnt_off)
        a(f"s_branch {d}")
        a(f"{o}:")
        wait_lds("v10", cnt_off, 1)
        a(f"{d}:")

    stamp()
    wait_lds("v10", C_XRDY, 1)
    for t in range(8):
        a(f"ds_read_b128 v[{32+4*t}:{35+4*t}], v{16+(t&3)} offset:{(t>>2)*256}")
    for t in range(8):
        wait_lds("v9", 0, t + 1)
        a(f"ds_read_b64_tr_b16 v[64:65], v14 offset:{t*8192}")
        a(f"ds_read_b64_tr_b16 v[66:67], v14 offset:{t*8192+1024}")
        a("s_waitcnt lgkmcnt(0)")
        a(f"v_mfma_f32_16x16x32_bf16 v[24:27], v[64:67], v[{32+4*t}:{35+4*t}], {'0' if t == 0 else 'v[24:27]'}")
    arrive(C_WQFREE)
    a("v_lshlrev_b32 v22, 14, v8")
    a("v_lshl_add_u32 v22, v4, 4, v22")
    a("s_lshl_b32 s56, s3, 17")
    a("s_lshl_b32 s7, s34, 12")
    a("s_add_u32 s56, s56, s7")
    a("s_lshl_b32 s7, s35, 9")
    a("s_add_u32 s56, s56, s7")
    a("s_lshl_b32 s7, s23, 6")
    a("s_add_u32 s56, s56, s7")
    a(f"s_add_u32 s56, s56, {WS_QP}")
    tag4(24)
    a("s_mov_b64 exec, s[46:47]")
    a("buffer_store_dwordx4 v[24:27], v22, s[36:39], s56 offen sc1")
    a("s_mov_b64 exec, -1")
    hint_flag(C_QPUB, WS_F1, 1)
    stamp()
    a("s_add_u32 s57, s23, 9")
    wait_lds("v9", 0, "s57")
    a("v_xor_b32 v22, v4, v5")
    a("v_lshlrev_b32 v22, 4, v22")
    a("v_lshl_add_u32 v22, v5, 8, v22")
    a("s_lshl_b32 s7, s23, 13")
    a(f"s_add_u32 s7, s7, {SLOTB}")
    a("v_add_u32 v22, s7, v22")
    for kk in range(4):
        if kk: a(f"v_xor_b32 v23, {kk<<6}, v22")
        for t in range(2):
            a(f"ds_read_b128 v[{32+16*t+4*kk}:{35+16*t+4*kk}], {'v23' if kk else 'v22'} offset:{t*4096}")
    a("s_waitcnt lgkmcnt(0)")
    arrive(C_KFREE)
    stamp()
    hint_wait(WS_F1, C_H1)
    stamp()
    a("v_lshrrev_b32 v22, 5, v2")
    a("v_lshlrev_b32 v22, 12, v22")
    a("v_and_b32 v23, 31, v2")
    a("v_lshl_add_u32 v22, v23, 4, v22")
    a("s_lshl_b32 s56, s3, 17")
    a("s_lshl_b32 s7, s35, 14")
    a("s_add_u32 s56, s56, s7")
    a("s_lshl_b32 s7, s23, 9")
    a("s_add_u32 s56, s56, s7")
    a(f"s_add_u32 s56, s56, {WS_QP}")
    a("s_add_u32 s57, s56, 8192")
    a("L_qg:")
    a("buffer_load_dwordx4 v[64:67], v22, s[36:39], s56 offen sc1")
    a("buffer_load_dwordx4 v[68:71], v22, s[36:39], s57 offen sc1")
    a("s_waitcnt vmcnt(0)")
    chk4(64, "v3", True); chk4(68, "v3")
    a("v_and_b32 v3, 255, v3")
    a("v_cmp_ne_u32 vcc, 0, v3")
    a("s_cbranch_vccz L_qok")
    a("s_sub_u32 s33, s33, 256")
    a("s_cbranch_scc0 L_qg")
    a("s_mov_b32 s33, 0")
    a("L_qok:")
    for i in range(4): a(f"v_add_f32 v{64+i}, v{64+i}, v{68+i}")
    for i in range(4): a(f"v_mov_b32 v{68+i}, v{64+i}")
    a("s_nop 1")
    for i in range(4): a(f"v_permlane32_swap_b32 v{64+i}, v{68+i}")
    a("s_nop 1")
    for i in range(4): a(f"v_add_f32 v{64+i}, v{64+i}, v{68+i}")
    a("v_cvt_pk_bf16_f32 v64, v64, v65")
    a("v_cvt_pk_bf16_f32 v65, v66, v67")
    a("v_lshrrev_b32 v22, 1, v23")
    a("v_lshlrev_b32 v22, 7, v22")
    a("v_and_b32 v3, 1, v23")
    a("v_lshl_add_u32 v22, v3, 3, v22")
    a("s_lshl_b32 s7, s23, 4")
    a(f"s_add_u32 s7, s7, {QIMG}")
    a("v_add_u32 v22, s7, v22")
    a("s_mov_b64 exec, 0xffffffff")
    a("ds_write_b64 v22, v[64:65]")
    a("s_mov_b64 exec, -1")
    a("s_waitcnt lgkmcnt(0)")
    arrive(C_QRDY)
    wait_lds("v10", C_QRDY, 8)
    stamp()
    for kk in range(4): a(f"ds_read_b128 v[{64+4*kk}:{67+4*kk}], v20 offset:{kk*512}")
    for kk in range(4):
        a(f"s_waitcnt lgkmcnt({3-kk})")
        for t in range(2):
            a(f"v_mfma_f32_16x16x32_bf16 v[{24+4*t}:{27+4*t}], v[{32+16*t+4*kk}:{35+16*t+4*kk}], v[{64+4*kk}:{67+4*kk}], {'0' if kk == 0 else f'v[{24+4*t}:{27+4*t}]'}")
    SC = (128 ** -0.5) * math.log2(math.e)
    a(f"s_mov_b32 s59, {f32(SC)}")
    a("v_lshlrev_b32 v22, 5, v8")
    a(f"v_add_u32 v22, {MAXB}, v22")
    a("s_lshl_b32 s7, s23, 2")
    a("v_add_u32 v23, s7, v22")
    a("s_nop 4")
    a("v_max3_f32 v64, v24, v25, v26")
    a("v_max3_f32 v64, v64, v27, v28")
    a("v_max3_f32 v64, v64, v29, v30")
    a("v_max_f32 v64, v64, v31")
    def xreduce(op, r, t):
        a(f"v_mov_b32 {t}, {r}")
        a("s_nop 1")
        a(f"v_permlane32_swap_b32 {r}, {t}")
        a("s_nop 1")
        a(f"{op} {r}, {r}, {t}")
        a(f"v_mov_b32 {t}, {r}")
        a("s_nop 1")
        a(f"v_permlane16_swap_b32 {r}, {t}")
        a("s_nop 1")
        a(f"{op} {r}, {r}, {t}")
    xreduce("v_max_f32", "v64", "v65")
    a("s_mov_b64 exec, 0xff")
    a("ds_write_b32 v23, v64")
    a("s_mov_b64 exec, -1")
    a("s_waitcnt lgkmcnt(0)")
    arrive(C_MRDY)
    wait_lds("v10", C_MRDY, 8)
    a("ds_read_b128 v[64:67], v22")
    a("ds_read_b128 v[68:71], v22 offset:16")
    a("s_waitcnt lgkmcnt(0)")
    a("v_max3_f32 v64, v64, v65, v66")
    a("v_max3_f32 v64, v64, v67, v68")
    a("v_max3_f32 v64, v64, v69, v70")
    a("v_max_f32 v64, v64, v71")
    a("v_mul_f32 v72, s59, v64")
    a("v_perm_b32 v72, v72, v21, s29")
    for i in range(8): a(f"v_fma_f32 v{24+i}, v{24+i}, s59, -v72")
    for i in range(8): a(f"v_exp_f32 v{24+i}, v{24+i}")
    a("s_nop 0")
    for i in range(4): a(f"v_cvt_pk_bf16_f32 v{64+i}, v{24+2*i}, v{25+2*i}")
    a("v_add_f32 v24, v24, v25")
    a("v_add_f32 v26, v26, v27")
    a("v_add_f32 v28, v28, v29")
    a("v_add_f32 v30, v30, v31")
    a("v_add_f32 v24, v24, v26")
    a("v_add_f32 v28, v28, v30")
    a("v_add_f32 v24, v24, v28")
    a("s_lshl_b32 s7, s23, 9")
    a(f"s_add_u32 s7, s7, {PIMG - QIMG}")
    a("v_add_u32 v3, s7, v20")
    a("s_mov_b64 exec, s[46:47]")
    a("ds_write_b128 v3, v[64:67]")
    a("s_mov_b64 exec, -1")
    xreduce("v_add_f32", "v24", "v25")
    a("s_mov_b64 exec, 0xff")
    a(f"ds_write_b32 v23, v24 offset:{SUMB-MAXB}")
    a("s_mov_b64 exec, -1")
    a("s_waitcnt lgkmcnt(0)")
    arrive(C_PRDY)
    wait_lds("v10", C_PRDY, 8)
    for t in range(8): a(f"ds_read_b128 v[{32+4*t}:{35+4*t}], v20 offset:{PIMG-QIMG+t*512}")
    a("s_cmp_eq_u32 s23, 0")
    a("s_cbranch_scc0 L_noml")
    a(f"ds_read_b128 v[64:67], v22 offset:{SUMB-MAXB}")
    a(f"ds_read_b128 v[68:71], v22 offset:{SUMB-MAXB+16}")
    a("s_waitcnt lgkmcnt(0)")
    for i in range(4): a(f"v_add_f32 v{64+i}, v{64+i}, v{68+i}")
    a("v_add_f32 v64, v64, v65")
    a("v_add_f32 v66, v66, v67")
    a("v_add_f32 v65, v64, v66")
    a("v_mov_b32 v64, v72")
    a("v_mov_b32 v66, v72")
    a("v_mov_b32 v67, v65")
    tag4(64)
    a("v_lshlrev_b32 v3, 9, v8          ; h*512")
    a("s_lshl_b32 s56, s3, 12")
    a("s_lshl_b32 s7, s4, 4")
    a("s_add_u32 s56, s56, s7")
    a(f"s_add_u32 s56, s56, {WS_ML}")
    a("s_mov_b64 exec, 0xff")
    a("buffer_store_dwordx4 v[64:67], v3, s[36:39], s56 offen sc1")
    a("s_mov_b64 exec, -1")
    a("L_noml:")
    a("v_lshlrev_b32 v22, 14, v8")
    a("v_lshl_add_u32 v22, v4, 4, v22")
    a("s_lshl_b32 s56, s3, 17")
    a("s_lshl_b32 s7, s4, 9")
    a("s_add_u32 s56, s56, s7")
    a("s_lshl_b32 s7, s23, 6")
    a("s_add_u32 s56, s56, s7")
    a(f"s_add_u32 s56, s56, {WS_OP}")
    stamp()
    for t in range(8):
        wait_lds("v9", 0, 17 + t)
        a(f"ds_read_b64_tr_b16 v[64:65], v15 offset:{t*8192}")
        a(f"ds_read_b64_tr_b16 v[66:67], v15 offset:{t*8192+4096}")
        a("s_waitcnt lgkmcnt(0)")
        a(f"v_mfma_f32_16x16x32_bf16 v[24:27], v[64:67], v[{32+4*t}:{35+4*t}], {'0' if t == 0 else 'v[24:27]'}")
    a("s_nop 7")
    tag4(24)
    a("s_mov_b64 exec, s[46:47]")
    a("buffer_store_dwordx4 v[24:27], v22, s[36:39], s56 offen sc1")
    a("s_mov_b64 exec, -1")
    hint_flag(C_OPUB, WS_F2, 2)
    stamp()
    a("s_lshl_b32 s7, s23, 1")
    a("v_xor_b32 v14, s7, v12")
    a("v_lshlrev_b32 v14, 5, v14")
    a("v_lshl_add_u32 v14, v7, 3, v14")
    a("v_lshl_add_u32 v15, v4, 3, v6")
    a("v_lshl_add_u32 v14, v15, 9, v14")
    a(f"v_add_u32 v14, {SLOTB}, v14")
    a("v_xor_b32 v15, 32, v14")
    a("v_lshlrev_b32 v19, 10, v8")
    a("v_lshl_add_u32 v19, v4, 4, v19")
    a("v_bfe_u32 v3, v2, 3, 1")
    a("v_lshl_add_u32 v19, v3, 6, v19")
    a("s_lshl_b32 s60, s3, 5")
    a("s_add_u32 s60, s60, s4")
    a("s_lshl_b32 s60, s60, 13")
    a("s_lshl_b32 s7, s23, 7")
    a("s_add_u32 s60, s60, s7")
    a(f"s_add_u32 s60, s60, {WS_FP}")
    a("s_cmp_lt_u32 s23, 4")
    a("s_cbranch_scc0 L_nogather")
    a("s_lshl_b32 s57, s5, 5")
    a("s_add_u32 s57, s57, s4          ; x3*8 + h3")
    a("v_lshrrev_b32 v16, 3, v2        ; b")
    a("v_lshlrev_b32 v17, 11, v16")
    a("v_lshl_add_u32 v17, v8, 4, v17   ; b*2048 + p*16")
    a("v_lshlrev_b32 v18, 6, v16")
    a("v_lshl_add_u32 v18, v7, 4, v18   ; (b*4+s)*16")
    a("s_lshl_b32 s61, s57, 14")
    a("s_lshl_b32 s7, s23, 7")
    a("s_add_u32 s61, s61, s7")
    a(f"s_add_u32 s61, s61, {WS_OP}")
    a("s_lshl_b32 s62, s57, 9")
    a(f"s_add_u32 s62, s62, {WS_ML}")
    a("v_lshrrev_b32 v22, 1, v8")
    a("v_lshl_add_u32 v22, v22, 3, v16")
    a("v_lshlrev_b32 v22, 4, v22")
    a("v_and_b32 v3, 1, v2")
    a("v_lshl_add_u32 v22, v3, 3, v22")
    a("s_lshl_b32 s7, s23, 9")
    a(f"s_add_u32 s7, s7, {OIMG}")
    a("v_add_u32 v22, s7, v22")
    hint_wait(WS_F2, C_H2)
    stamp()
    a("L_og:")
    a("buffer_load_dwordx4 v[80:83], v18, s[36:39], s62 offen sc1")
    for s in range(4):
        off = f" offset:{s*512}" if s else ""
        a(f"buffer_load_dwordx4 v[{64+4*s}:{67+4*s}], v17, s[36:39], s61 offen{off} sc1")
    a("s_waitcnt vmcnt(4)")
    chk4(80, "v3", True)
    a("v_max_f32_dpp v82, v80, v80 quad_perm:[1,0,3,2] row_mask:0xf bank_mask:0xf")
    a("s_nop 1")
    a("v_max_f32_dpp v82, v82, v82 quad_perm:[2,3,0,1] row_mask:0xf bank_mask:0xf")
    a("v_sub_f32 v80, v80, v82")
    a("v_exp_f32 v80, v80")
    a("s_nop 0")
    a("v_mul_f32 v81, v81, v80")
    a("s_nop 1")
    a("v_add_f32_dpp v81, v81, v81 quad_perm:[1,0,3,2] row_mask:0xf bank_mask:0xf")
    a("s_nop 1")
    a("v_add_f32_dpp v81, v81, v81 quad_perm:[2,3,0,1] row_mask:0xf bank_mask:0xf")
    a("v_rcp_f32 v81, v81")
    a("s_nop 0")
    a("v_mul_f32 v80, v80, v81")
    a("s_waitcnt vmcnt(0)")
    for s in range(4): chk4(64 + 4*s, "v3")
    a("v_and_b32 v3, 255, v3")
    a("v_cmp_ne_u32 vcc, 0, v3")
    a("s_cbranch_vccz L_ook")
    a("s_sub_u32 s33, s33, 256")
    a("s_cbranch_scc0 L_og")
    a("s_mov_b32 s33, 0")
    a("L_ook:")
    for i in range(4): a(f"v_mul_f32_dpp v{64+i}, v80, v{64+i} quad_perm:[0,0,0,0] row_mask:0xf bank_mask:0xf")
    for s in range(1, 4):
        for i in range(4): a(f"v_fmac_f32_dpp v{64+i}, v80, v{64+4*s+i} quad_perm:[{s},{s},{s},{s}] row_mask:0xf bank_mask:0xf")
    a("v_cvt_pk_bf16_f32 v64, v64, v65")
    a("v_cvt_pk_bf16_f32 v65, v66, v67")
    a("ds_write_b64 v22, v[64:65]")
    a("s_waitcnt lgkmcnt(0)")
    arrive(C_ORDY)
    if diag:
        a("s_branch L_g2")
    a("L_nogather:")
    if diag:
        nst[0] -= 1
        stamp()
        a("L_g2:")
    stamp()
    for t in range(4):
        wait_lds("v9", 0, 26 + 2*t)
        for u in range(2):
            for hf in range(2):
                r = 32 + (t*2+u)*4 + hf*2
                a(f"ds_read_b64_tr_b16 v[{r}:{r+1}], v{14+u} offset:{t*16384 + hf*2048}")
    stamp()
    wait_lds("v10", C_ORDY, 4)
    for t in range(4): a(f"ds_read_b128 v[{64+4*t}:{67+4*t}], v20 offset:{OIMG-QIMG+t*512}")
    for t in range(4):
        a(f"s_waitcnt lgkmcnt({3-t})")
        for u in range(2):
            r = 32 + (t*2+u)*4
            a(f"v_mfma_f32_16x16x32_bf16 v[{24+4*u}:{27+4*u}], v[{r}:{r+3}], v[{64+4*t}:{67+4*t}], {'0' if t == 0 else f'v[{24+4*u}:{27+4*u}]'}")
    a("v_lshlrev_b32 v16, 13, v4")
    a("v_lshl_add_u32 v16, v5, 4, v16    ; c4*8192 + piece*16")
    a("s_lshl_b32 s61, s3, 18")
    a("s_lshl_b32 s7, s35, 10")
    a("s_add_u32 s61, s61, s7")
    a("s_lshl_b32 s7, s34, 8")
    a("s_add_u32 s61, s61, s7")
    a(f"s_add_u32 s61, s61, {WS_FP}")
    for i in range(4): a(f"v_cndmask_b32 v{24+i}, v{28+i}, v{24+i}, s[46:47]")
    tag4(24)
    a("buffer_store_dwordx4 v[24:27], v19, s[36:39], s60 offen sc1")
    stamp()
    a("s_cmp_eq_u32 s23, 0")
    a("s_cbranch_scc0 L_fin")
    a("s_mov_b32 s40, s18")
    a("s_mov_b32 s41, s19")
    a("s_mov_b32 s42, 32768")
    for i in range(1, 8): a(f"s_add_u32 s{61+i}, s61, {i*32768}")
    a("s_lshl_b32 s56, s35, 12")
    a("s_lshl_b32 s7, s3, 9")
    a("s_add_u32 s56, s56, s7")
    a("s_lshl_b32 s7, s34, 7")
    a("s_add_u32 s56, s56, s7")
    a("v_lshlrev_b32 v17, 3, v5")
    a("L_fg:")
    for i in range(8): a(f"buffer_load_dwordx4 v[{32+4*i}:{35+4*i}], v16, s[36:39], s{61+i} offen sc1")
    for i in range(8):
        a(f"s_waitcnt vmcnt({7-i})")
        chk4(32 + 4*i, "v3", i == 0)
        if i:
            for k in range(4): a(f"v_add_f32 v{24+k}, v{24+k}, v{32+4*i+k}")
        else:
            for k in range(4): a(f"v_mov_b32 v{24+k}, v{32+k}")
    a("v_and_b32 v3, 255, v3")
    a("v_cmp_ne_u32 vcc, 0, v3")
    a("s_cbranch_vccz L_fok")
    a("s_sub_u32 s33, s33, 256")
    a("s_cbranch_scc0 L_fg")
    a("s_mov_b32 s33, 0")
    a("L_fok:")
    for sw in ("v_permlane32_swap_b32", "v_permlane16_swap_b32"):
        for k in range(4): a(f"v_mov_b32 v{28+k}, v{24+k}")
        a("s_nop 1")
        for k in range(4): a(f"{sw} v{24+k}, v{28+k}")
        a("s_nop 1")
        for k in range(4): a(f"v_add_f32 v{24+k}, v{24+k}, v{28+k}")
    a("v_cvt_pk_bf16_f32 v24, v24, v25")
    a("v_cvt_pk_bf16_f32 v25, v26, v27")
    if padto:
        a("L_pad:")
        a("s_memrealtime s[96:97]")
        a("s_waitcnt lgkmcnt(0)")
        a("s_sub_u32 s7, s96, s98")
        a(f"s_cmp_lt_u32 s7, {padto*100}")
        a("s_cbranch_scc1 L_pad")
    a("s_mov_b64 exec, 0xffff")
    a("buffer_store_dwordx2 v[24:25], v17, s[40:43], s56 offen")
    a("s_and_b32 s7, s2, 0xfb")
    a("s_cmp_eq_u32 s7, 0")
    a("s_cbranch_scc0 L_noep")
    a("s_lshl_b32 s7, s5, 7")
    a("v_mov_b32 v3, 0")
    a("s_mov_b64 exec, 1")
    a("buffer_store_dword v21, v3, s[36:39], s7 offen")
    a("L_noep:")
    a("s_mov_b64 exec, -1")
    if diag:
        a("s_waitcnt vmcnt(0)")
    a("L_fin:")
    stamp()
    dump_stamps()
    a("L_end:")
    a("s_endpgm")
    return wrap(a.text(), 256, 576, LDS_BYTES, 84), nst_loader, nst[0]

if __name__ == "__main__":
    kw = eval("dict(" + (sys.argv[2] if len(sys.argv) > 2 else "") + ")")
    t, n1, n2 = gen(**kw)
    open(sys.argv[1], "w").write(t)
    print("stamps", n1, n2, "lines", t.count("\n"))
```
